```python
import torch

def _softmax(x, axis=-1):
    return torch.softmax(x, dim=axis)
def _gelu(x):
    return torch.nn.functional.gelu(x, approximate="tanh")
def _silu(x):
    return torch.nn.functional.silu(x)
def _sigmoid(x):
    return torch.sigmoid(x)
def _layernorm(x, axis=-1, eps=1e-5):
    m = x.mean(dim=axis, keepdim=True)
    v = x.var(dim=axis, keepdim=True, unbiased=False)
    return (x - m) / torch.sqrt(v + eps)
def _scatter_add(tgt, idx, src, axis=0):
    return tgt.clone().index_add_(axis, idx, src)
def _segment_sum(src, seg, n):
    out = torch.zeros((n,) + src.shape[1:], dtype=src.dtype)
    return out.index_add_(0, seg, src)
def _pad(x, pw):
    flat = tuple(v for pair in reversed(pw) for v in pair)
    return torch.nn.functional.pad(x, flat)

kernel_name = 'interleave_layers__ssm_conv_h3__dense_activation_silu__prompt'

def setup_inputs():

    _w = (lambda a: (lambda t: t.to(torch.bfloat16) if t.is_floating_point() else t)(torch.as_tensor(a)))
    def _A_setup():
        B, S, D = 1, 2048, 640
        ks = 4
        return {
            "q": _w((lambda *s: torch.randn(*s, dtype=torch.bfloat16) * 0.05)(B, S, D)),
            "k": _w((lambda *s: torch.randn(*s, dtype=torch.bfloat16) * 0.2)(B, S, D)),
            "v": _w((lambda *s: torch.randn(*s, dtype=torch.bfloat16) * 0.2)(B, S, D)),
            "shift_k": _w((lambda *s: torch.randn(*s, dtype=torch.bfloat16) * 0.2)(D, ks) * 0.5),
            "ssm_k": _w((lambda *s: torch.randn(*s, dtype=torch.bfloat16) * 0.8)(D, S) * (1.0 / S ** 0.5)),
            "ssm_D": _w((lambda *s: torch.randn(*s, dtype=torch.bfloat16) * 0.2)(D)),
        }
    _A_in = _A_setup()

    def _B_setup():
        B, S, D, F = 1, 2048, 640, 1728
        return {
            "x": _w((lambda *s: torch.randn(*s, dtype=torch.bfloat16) * 0.05)(B, S, D)),
            "w1": _w((lambda *s: torch.randn(*s, dtype=torch.bfloat16) * 0.8)(D, F) * (D ** -0.5)),
            "w2": _w((lambda *s: torch.randn(*s, dtype=torch.bfloat16) * 0.2)(F, D) * (F ** -0.5)),
        }
    _B_in = _B_setup()

    return {
        "A_q": _A_in["q"],
        "A_k": _A_in["k"],
        "A_v": _A_in["v"],
        "A_shift_k": _A_in["shift_k"],
        "A_ssm_k": _A_in["ssm_k"],
        "A_ssm_D": _A_in["ssm_D"],
        "B_x": _B_in["x"],
        "B_w1": _B_in["w1"],
        "B_w2": _B_in["w2"],
    }

def reference(A_q, A_k, A_v, A_shift_k, A_ssm_k, A_ssm_D, B_x, B_w1, B_w2):
    def _A_ref(q, k, v, shift_k, ssm_k, ssm_D):
        B, S, D = q.shape
        ks = shift_k.shape[-1]
        k_pad = _pad(k, ((0, 0), (ks - 1, 0), (0, 0)))
        k_shift = torch.zeros_like(k)
        for t in range(ks):
            k_shift = k_shift + k_pad[:, t:t + S, :] * shift_k[:, ks - 1 - t][None, None, :]
        kv = k_shift * v
        L = 2 * S
        kv_pad = _pad(kv, ((0, 0), (0, S), (0, 0)))
        kf_pad = _pad(ssm_k, ((0, 0), (0, S)))
        kv_f = (lambda x, axes=(-2,-1): torch.fft.rfft2(x.float(), dim=axes))(kv_pad[:, None, :, :], axes=(1, 2))
        kf_f = (lambda x, axes=(-2,-1): torch.fft.rfft2(x.float(), dim=axes))(kf_pad[:, None, :], axes=(1, 2))
        kf_f = (lambda x, *d: x.permute(*d))(kf_f, 1, 2, 0)
        y_f = kv_f * kf_f[None, :, :, :]
        y = (lambda x, s, axes=(-2,-1): torch.fft.irfft2(x, s=s, dim=axes).to(torch.bfloat16))(y_f, (1, L), axes=(1, 2))[:, 0, :S, :]
        y = y + kv * ssm_D[None, None, :]
        return q * y

    def _B_ref(x, w1, w2):
        h = torch.einsum("bsd,df->bsf", x, w1)
        h = _silu(h)
        out = torch.einsum("bsf,fd->bsd", h, w2)
        return out

    x = A_q
    x = x + _A_ref(_layernorm(x, axis=-1), A_k, A_v, A_shift_k, A_ssm_k, A_ssm_D)
    x = x + _B_ref(_layernorm(x, axis=-1), B_w1, B_w2)
    x = x + _A_ref(_layernorm(x, axis=-1), A_k, A_v, A_shift_k, A_ssm_k, A_ssm_D)
    x = x + _B_ref(_layernorm(x, axis=-1), B_w1, B_w2)
    return x
```

```python
import sys

NAME = "interleave_layers__ssm_conv_h3__dense_activation_silu__prompt"
S, D, F = 2048, 640, 1728
XBYTES = S * D * 2
Y_OFF = 0x0000000
XR_OFF = 0x0400000
X2_OFF = 0x0800000
ST0_OFF = 0x0C00000
ST1_OFF = 0x0C40000
CS_OFF = 0x0C80000
W1F_OFF = 0x1000000
W2F_OFF = 0x1400000
H_OFF = 0x1800000
STBYTES = S * 64
WFBYTES = 108 * 20 * 1024
HBYTES = 128 * 54 * 1024


class Asm:
    def __init__(self):
        self.lines = []
        self.vm = []
        self.lg = []
        self.uid = 0

    def __call__(self, s):
        self.lines.append("    " + s)

    def label(self, s):
        self.lines.append(s + ":")

    def raw(self, s):
        self.lines.append(s)

    def newlabel(self, p="L"):
        self.uid += 1
        return f"{p}_{self.uid}"

    def vmi(self, s, tag=None):
        self(s)
        self.vm.append(tag)

    def vmwait(self, tag):
        idx = [i for i, t in enumerate(self.vm) if t == tag]
        if not idx:
            return
        last = idx[-1]
        n = len(self.vm) - 1 - last
        assert n <= 63, n
        self(f"s_waitcnt vmcnt({n})")
        self.vm = self.vm[last + 1:]

    def vmall(self):
        self("s_waitcnt vmcnt(0)")
        self.vm = []

    def lgi(self, s, tag=None):
        self(s)
        self.lg.append(tag)

    def lgwait(self, tag):
        idx = [i for i, t in enumerate(self.lg) if t == tag]
        if not idx:
            return
        last = idx[-1]
        n = len(self.lg) - 1 - last
        if n > 15:
            n = 15
            self("s_waitcnt lgkmcnt(0)")
            self.lg = []
            return
        self(f"s_waitcnt lgkmcnt({n})")
        self.lg = self.lg[last + 1:]

    def lgall(self):
        self("s_waitcnt lgkmcnt(0)")
        self.lg = []


def vr(a, n=1):
    return f"v{a}" if n == 1 else f"v[{a}:{a + n - 1}]"


def sr(a, n=1):
    return f"s{a}" if n == 1 else f"s[{a}:{a + n - 1}]"


def srd(a, dst, base, off, nbytes):
    if off:
        a(f"s_add_u32 s{dst}, s{base}, 0x{off:x}")
        a(f"s_addc_u32 s{dst + 1}, s{base + 1}, 0")
    else:
        a(f"s_mov_b32 s{dst}, s{base}")
        a(f"s_mov_b32 s{dst + 1}, s{base + 1}")
    a(f"s_mov_b32 s{dst + 2}, 0x{nbytes:x}")
    a(f"s_mov_b32 s{dst + 3}, 0x00020000")


def load_ptrs(a):
    a("s_load_dwordx16 s[16:31], s[0:1], 0")
    a("s_load_dwordx8 s[32:39], s[0:1], 64")


def bf16r(a, dst, src):
    a(f"v_cvt_pk_bf16_f32 v{dst}, v{src}, v{src}")
    a(f"v_lshlrev_b32 v{dst}, 16, v{dst}")


def xor16_32_sum(a, x, t):
    a(f"v_mov_b32 v{t}, v{x}")
    a("s_nop 1")
    a(f"v_permlane16_swap_b32 v{x}, v{t}")
    a("s_nop 1")
    a(f"v_add_f32 v{x}, v{x}, v{t}")
    a(f"v_mov_b32 v{t}, v{x}")
    a("s_nop 1")
    a(f"v_permlane32_swap_b32 v{x}, v{t}")
    a("s_nop 1")
    a(f"v_add_f32 v{x}, v{x}, v{t}")


def kernel_begin(a, name):
    a.raw(".p2align 8")
    a.raw(f".globl {name}")
    a.raw(f".type {name},@function")
    a.label(name)
    a.vm = []
    a.lg = []


def kd(name, vgpr, sgpr=102):
    acc = (vgpr + 3) // 4 * 4
    return f""".p2align 6
.amdhsa_kernel {name}
  .amdhsa_next_free_vgpr {vgpr}
  .amdhsa_next_free_sgpr {sgpr}
  .amdhsa_accum_offset {acc}
  .amdhsa_group_segment_fixed_size 0
  .amdhsa_kernarg_size 96
  .amdhsa_user_sgpr_count 2
  .amdhsa_user_sgpr_kernarg_segment_ptr 1
  .amdhsa_system_sgpr_workgroup_id_x 1
.end_amdhsa_kernel
"""


N_CONV, N_W1, N_W2, N_ST = 160, 27, 30, 32
K1_GRID = N_CONV + N_W1 + N_W2 + N_ST
TCOPY = 4160
TCH = 8 * TCOPY
XS0 = 4 * TCH
XSCH = 4608
K1_LDS = XS0 + 4 * XSCH


def k1_conv(a):
    srd(a, 40, 18, 0, XBYTES)
    srd(a, 44, 20, 0, XBYTES)
    srd(a, 48, 24, 0, XBYTES)
    srd(a, 52, 38, Y_OFF, XBYTES)
    a("s_lshl_b32 s56, s2, 3")
    a("s_lshl_b32 s57, s2, 5")
    a("s_load_dwordx8 s[64:71], s[22:23], s57")
    a("s_load_dwordx2 s[72:73], s[26:27], s56")
    a("s_mov_b32 s58, 3840")
    a("s_mov_b32 s59, 7680")
    a("v_mul_u32_u24 v3, 10240, v0")
    a("v_add_u32 v3, s56, v3")
    a("v_subrev_u32 v4, 3840, v3")
    for j in range(3):
        a.vmi(f"buffer_load_dwordx2 {vr(10 + 2 * j, 2)}, v4, s[40:43], 0 offen offset:{1280 * j}", "kv")
    offs = [("0", 0), ("0", 1280), ("0", 2560), ("s58", 0), ("s58", 1280), ("s58", 2560), ("s59", 0), ("s59", 1280)]
    for j in range(8):
        so, im = offs[j]
        a.vmi(f"buffer_load_dwordx2 {vr(16 + 2 * j, 2)}, v3, s[40:43], {so} offen offset:{im}", "kv")
    for j in range(8):
        so, im = offs[j]
        a.vmi(f"buffer_load_dwordx2 {vr(32 + 2 * j, 2)}, v3, s[44:47], {so} offen offset:{im}", "kv")
    a("s_lshl_b32 s60, s2, 2")
    a("s_add_u32 s60, s60, s3")
    a("s_lshl_b32 s60, s60, 12")
    a("v_lshlrev_b32 v5, 4, v2")
    a("v_add_u32 v5, s60, v5")
    a("v_subrev_u32 v6, 16, v5")
    for b in range(4):
        a.vmi(f"buffer_load_dwordx4 {vr(48 + 8 * b, 4)}, v6, s[48:51], 0 offen offset:{1024 * b}", "h")
        a.vmi(f"buffer_load_dwordx4 {vr(52 + 8 * b, 4)}, v5, s[48:51], 0 offen offset:{1024 * b}", "h")
    a("v_mov_b32 v80, 0")
    a("v_mov_b32 v81, 0")
    a("v_mov_b32 v82, 0")
    a("v_mov_b32 v83, 0")
    a("v_and_b32 v7, 127, v0")
    a("v_lshrrev_b32 v8, 5, v7")
    a(f"v_mul_u32_u24 v8, {XSCH}, v8")
    a("v_and_b32 v7, 31, v7")
    a("v_lshl_add_u32 v7, v7, 4, v8")
    a(f"v_add_u32 v7, {XS0}, v7")
    a.lgi(f"ds_write_b128 v7, v[80:83]")
    a(f"s_mul_i32 s61, s3, {TCH}")
    a("v_and_b32 v7, 7, v2")
    a(f"v_mul_u32_u24 v7, {TCOPY}, v7")
    a("v_add_u32 v7, s61, v7")
    a.lgi("ds_write_b128 v7, v[80:83]")
    a("s_waitcnt lgkmcnt(0)")
    a.lg = []
    for cc in range(4):
        a(f"s_lshl_b32 s{76 + 4 * cc + 0}, s{64 + 2 * cc}, 16")
        a(f"s_and_b32 s{76 + 4 * cc + 1}, s{64 + 2 * cc}, 0xffff0000")
        a(f"s_lshl_b32 s{76 + 4 * cc + 2}, s{65 + 2 * cc}, 16")
        a(f"s_and_b32 s{76 + 4 * cc + 3}, s{65 + 2 * cc}, 0xffff0000")
    a("s_lshl_b32 s62, s3, 4")
    a("s_lshr_b64 s[74:75], s[72:73], s62")
    a("s_lshl_b32 s74, s74, 16")
    a("s_mov_b32 s92, 0xffff0000")
    a("s_mov_b32 s93, 0x0000ffff")
    a("v_lshlrev_b32 v7, 4, v2")
    a("v_add_u32 v7, s61, v7")
    a.vmwait("h")
    a("v_cmp_eq_u32 vcc, 0, v2")
    a("s_nop 1")
    for r in range(4):
        a(f"v_cndmask_b32 v{48 + r}, v{48 + r}, v80, vcc")
    q = 0
    for b in range(4):
        def Dreg(i):
            return 48 + 8 * b + (i + 4)
        for e in range(8):
            quad = 84 + 4 * (q % 4)
            q += 1
            for m in range(4):
                av = e - 2 * m
                if av % 2:
                    i = (av - 1) // 2
                    a(f"v_alignbit_b32 v{quad + m}, v{Dreg(i)}, v{Dreg(i)}, 16")
                else:
                    i = av // 2
                    a(f"v_bfi_b32 v{quad + m}, s93, v{Dreg(i)}, v{Dreg(i - 1)}")
            a.lgi(f"ds_write_b128 v7, {vr(quad, 4)} offset:{e * TCOPY + 16 + 1024 * b}")
    a.vmwait("kv")
    a("v_lshlrev_b32 v8, 4, v0")
    a(f"v_add_u32 v8, {XS0}, v8")
    KU, VU, KS = 100, 112, 120
    for cc in range(4):
        for r in range(11):
            src = 10 + 2 * r + (cc >> 1)
            if cc & 1:
                a(f"v_and_b32 v{KU + r}, s92, v{src}")
            else:
                a(f"v_lshlrev_b32 v{KU + r}, 16, v{src}")
        for j in range(8):
            src = 32 + 2 * j + (cc >> 1)
            if cc & 1:
                a(f"v_and_b32 v{VU + j}, s92, v{src}")
            else:
                a(f"v_lshlrev_b32 v{VU + j}, 16, v{src}")
        for j in range(8):
            a(f"v_mul_f32 v{KS + j}, s{76 + 4 * cc + 3}, v{KU + j}")
        for t in (2, 1, 0):
            for j in range(8):
                a(f"v_fma_f32 v{KS + j}, v{KU + j + 3 - t}, s{76 + 4 * cc + t}, v{KS + j}")
        for j in range(8):
            a(f"v_mul_f32 v{KS + j}, v{KS + j}, v{VU + j}")
        quad = 84 + 4 * (cc % 4)
        for m in range(4):
            a(f"v_cvt_pk_bf16_f32 v{quad + m}, v{KS + 2 * m}, v{KS + 2 * m + 1}")
        a.lgi(f"ds_write_b128 v8, {vr(quad, 4)} offset:{cc * XSCH + 512}")
    a("v_and_b32 v9, 15, v2")
    a("v_lshrrev_b32 v10, 4, v2")
    a("v_and_b32 v11, 7, v9")
    a(f"v_mul_u32_u24 v11, {TCOPY}, v11")
    a("v_lshrrev_b32 v12, 3, v9")
    a("v_add_u32 v12, 3, v12")
    a("v_sub_u32 v12, v12, v10")
    a("v_lshl_add_u32 v11, v12, 4, v11")
    a("v_add_u32 v5, s61, v11")
    a(f"s_mul_i32 s63, s3, {XSCH}")
    a(f"s_add_u32 s63, s63, {XS0}")
    a("v_lshlrev_b32 v11, 5, v9")
    a("v_lshl_add_u32 v11, v10, 4, v11")
    a("v_add_u32 v6, s63, v11")
    a("v_add_u32 v6, 32, v6")
    a("v_lshlrev_b32 v11, 5, v9")
    a("v_lshl_add_u32 v11, v10, 3, v11")
    a("v_add_u32 v7, s63, v11")
    a("v_add_u32 v7, 0x200, v7")
    ACC = 16
    for i in range(32):
        a(f"v_mov_b32 v{ACC + i}, 0")
    a.lgall()
    a("s_barrier")
    AS = [48, 112]
    BS = [80, 144]

    def issue_frags(rho):
        st = rho & 1
        for d in range(8):
            qq = 8 * d - rho
            a.lgi(f"ds_read_b128 {vr(BS[st] + 4 * d, 4)}, v6 offset:{64 * (qq + 7)}", f"f{rho}")
        for aa in range(8):
            p = rho + 8 * aa
            a.lgi(f"ds_read_b128 {vr(AS[st] + 4 * aa, 4)}, v5 offset:{64 * p}", f"f{rho}")

    issue_frags(0)
    for rho in range(8):
        st = rho & 1
        a.lgall()
        if rho + 1 < 8:
            issue_frags(rho + 1)
        for aa in range(8):
            for t in range(aa, 8):
                d = t - aa
                a(f"v_mfma_f32_16x16x32_bf16 {vr(ACC + 4 * t, 4)}, {vr(AS[st] + 4 * aa, 4)}, "
                  f"{vr(BS[st] + 4 * d, 4)}, {vr(ACC + 4 * t, 4)}")
    for t in range(8):
        a.lgi(f"ds_read_b64 {vr(48 + 2 * t, 2)}, v7 offset:{512 * t}")
    a.lgall()
    a("s_nop 7")
    for t in range(8):
        T = 64 + 12 * (t % 2)
        kvr = 48 + 2 * t
        a(f"v_lshlrev_b32 v{T + 0}, 16, v{kvr}")
        a(f"v_and_b32 v{T + 1}, s92, v{kvr}")
        a(f"v_lshlrev_b32 v{T + 2}, 16, v{kvr + 1}")
        a(f"v_and_b32 v{T + 3}, s92, v{kvr + 1}")
        for j in range(4):
            a(f"v_mul_f32 v{T + j}, s74, v{T + j}")
        a(f"v_cvt_pk_bf16_f32 v{T + 4}, v{T + 0}, v{T + 1}")
        a(f"v_cvt_pk_bf16_f32 v{T + 5}, v{T + 2}, v{T + 3}")
        a(f"v_cvt_pk_bf16_f32 v{T + 6}, v{ACC + 4 * t}, v{ACC + 4 * t + 1}")
        a(f"v_cvt_pk_bf16_f32 v{T + 7}, v{ACC + 4 * t + 2}, v{ACC + 4 * t + 3}")
        a(f"v_lshlrev_b32 v{T + 0}, 16, v{T + 4}")
        a(f"v_and_b32 v{T + 1}, s92, v{T + 4}")
        a(f"v_lshlrev_b32 v{T + 2}, 16, v{T + 5}")
        a(f"v_and_b32 v{T + 3}, s92, v{T + 5}")
        a(f"v_lshlrev_b32 v{T + 8}, 16, v{T + 6}")
        a(f"v_and_b32 v{T + 9}, s92, v{T + 6}")
        a(f"v_lshlrev_b32 v{T + 10}, 16, v{T + 7}")
        a(f"v_and_b32 v{T + 11}, s92, v{T + 7}")
        for j in range(4):
            a(f"v_add_f32 v{T + j}, v{T + j}, v{T + 8 + j}")
        a(f"v_cvt_pk_bf16_f32 v{T + 4}, v{T + 0}, v{T + 1}")
        a(f"v_cvt_pk_bf16_f32 v{T + 5}, v{T + 2}, v{T + 3}")
        a.lgi(f"ds_write_b64 v7, {vr(T + 4, 2)} offset:{512 * t}")
    a.lgall()
    a("s_barrier")
    for cc in range(4):
        a.lgi(f"ds_read_b128 {vr(16 + 4 * cc, 4)}, v8 offset:{cc * XSCH + 512}")
    a("s_mov_b32 s94, 0x05040100")
    a("s_mov_b32 s95, 0x07060302")
    a.lgall()
    for j in range(8):
        sel = "s95" if j & 1 else "s94"
        dw = j >> 1
        o = 32 + 2 * j
        a(f"v_perm_b32 v{o}, v{16 + 4 + dw}, v{16 + dw}, {sel}")
        a(f"v_perm_b32 v{o + 1}, v{16 + 12 + dw}, v{16 + 8 + dw}, {sel}")
        so, im = offs[j]
        a.vmi(f"buffer_store_dwordx2 {vr(o, 2)}, v3, s[52:55], {so} offen offset:{im}")
    a("s_endpgm")


def k1_relayout(a, which):
    if which == 1:
        pitch, nks, first = 3456, 20, N_CONV
        srd(a, 40, 30, 0, D * F * 2)
        srd(a, 44, 38, W1F_OFF, WFBYTES)
        srd(a, 48, 38, CS_OFF, F * 4)
        a(f"s_sub_u32 s4, s2, {first}")
        a("s_lshl_b32 s4, s4, 2")
        a("s_add_u32 s4, s4, s3")
        a("s_mov_b32 s5, 0")
        a("s_mul_i32 s6, s4, 20")
    else:
        pitch, nks, first = 1280, 18, N_CONV + N_W1
        srd(a, 40, 32, 0, D * F * 2)
        srd(a, 44, 38, W2F_OFF, WFBYTES)
        a(f"s_sub_u32 s7, s2, {first}")
        a("s_lshl_b32 s7, s7, 2")
        a("s_add_u32 s7, s7, s3")
        a("s_mul_hi_u32 s4, s7, 0x55555556")
        a("s_mul_i32 s5, s4, 3")
        a("s_sub_u32 s5, s7, s5")
        a("s_mul_i32 s5, s5, 18")
        a("s_mul_i32 s6, s4, 54")
        a("s_add_u32 s6, s6, s5")
    a("v_and_b32 v9, 15, v2")
    a("v_lshrrev_b32 v10, 4, v2")
    a("s_lshl_b32 s8, s4, 5")
    a("v_lshl_add_u32 v11, v9, 1, s8")
    gm = 8 if which == 1 else 4
    a(f"v_mul_u32_u24 v12, {gm * pitch}, v10")
    a("v_add_u32 v11, v11, v12")
    for j in range(8):
        row = j if which == 1 else ((j & 3) + 16 * (j >> 2))
        a(f"v_add_u32 v{16 + j}, {row * pitch}, v11")
    a("v_lshlrev_b32 v13, 4, v2")
    a(f"s_mul_i32 s9, s5, {32 * pitch}")
    a("s_lshl_b32 s10, s6, 10")
    a("s_mov_b32 s92, 0xffff0000")
    a("v_mov_b32 v14, 0")
    DEPTH = 6
    for kk in range(nks + DEPTH):
        if kk >= DEPTH:
            c = kk - DEPTH
            slot = 32 + 8 * (c % DEPTH)
            pk = 84 + 4 * (c % 2)
            a.vmwait(f"l{c}")
            for m in range(4):
                a(f"v_lshl_or_b32 v{pk + m}, v{slot + 2 * m + 1}, 16, v{slot + 2 * m}")
            if which == 1:
                for m in range(8):
                    a(f"v_lshlrev_b32 v24, 16, v{slot + m}")
                    a("v_add_f32 v14, v14, v24")
            a.vmi(f"buffer_store_dwordx4 {vr(pk, 4)}, v13, s[44:47], s10 offen")
            a("s_add_u32 s10, s10, 1024")
        if kk < nks:
            slot = 32 + 8 * (kk % DEPTH)
            for j in range(8):
                a.vmi(f"buffer_load_ushort v{slot + j}, v{16 + j}, s[40:43], s9 offen", f"l{kk}")
            a(f"s_add_u32 s9, s9, {32 * pitch}")
    if which == 1:
        xor16_32_sum(a, 14, 15)
        a("s_lshl_b32 s8, s4, 6")
        a("v_lshl_add_u32 v11, v9, 2, s8")
        a.vmi("buffer_store_dword v14, v11, s[48:51], 0 offen")
    a("s_endpgm")


def k1_stats(a):
    first = N_CONV + N_W1 + N_W2
    srd(a, 40, 16, 0, XBYTES)
    srd(a, 44, 38, ST0_OFF, STBYTES)
    a(f"s_sub_u32 s4, s2, {first}")
    a("s_lshl_b32 s4, s4, 2")
    a("s_add_u32 s4, s4, s3")
    a("s_mul_i32 s5, s4, 20480")
    a("v_lshlrev_b32 v3, 2, v2")
    a("s_lshl_b32 s6, s4, 10")
    a("v_lshrrev_b32 v4, 3, v2")
    a("v_lshlrev_b32 v4, 3, v4")
    a("s_mov_b32 s92, 0xffff0000")
    a("s_mov_b32 s7, 0x3c4ccccd")
    for half in range(2):
        for r in range(8):
            for j in range(5):
                a.vmi(f"buffer_load_dword v{16 + 5 * r + j}, v3, s[40:43], s5 offen offset:{256 * j}", f"r{r}")
            a("s_add_u32 s5, s5, 1280")
        for r in range(8):
            a.vmwait(f"r{r}")
            U = 64
            for j in range(5):
                a(f"v_lshlrev_b32 v{U + 2 * j}, 16, v{16 + 5 * r + j}")
                a(f"v_and_b32 v{U + 2 * j + 1}, s92, v{16 + 5 * r + j}")
            a(f"v_add_f32 v80, v{U}, v{U + 1}")
            for j in range(2, 10):
                a(f"v_add_f32 v80, v80, v{U + j}")

            def red8(x):
                a("s_nop 1")
                a(f"v_add_f32_dpp v{x}, v{x}, v{x} quad_perm:[1,0,3,2] row_mask:0xf bank_mask:0xf")
                a("s_nop 1")
                a(f"v_add_f32_dpp v{x}, v{x}, v{x} quad_perm:[2,3,0,1] row_mask:0xf bank_mask:0xf")
                a("s_nop 1")
                a(f"v_add_f32_dpp v{x}, v{x}, v{x} row_half_mirror row_mask:0xf bank_mask:0xf")
            red8(80)
            a("v_mul_f32 v82, s7, v80")
            for j in range(10):
                a(f"v_sub_f32 v{U + j}, v{U + j}, v82")
            a(f"v_mul_f32 v81, v{U}, v{U}")
            for j in range(1, 10):
                a(f"v_fma_f32 v81, v{U + j}, v{U + j}, v81")
            red8(81)
            a.vmi("buffer_store_dwordx2 v[80:81], v4, s[44:47], s6 offen")
            a("s_add_u32 s6, s6, 64")
            a("s_nop 1")
    a("s_endpgm")


def gen_k1(a):
    kernel_begin(a, "k1_kernel")
    a(f"s_cmp_ge_u32 s2, {K1_GRID}")
    a("s_cbranch_scc1 k1_exit")
    load_ptrs(a)
    a("v_lshrrev_b32 v1, 6, v0")
    a("v_and_b32 v2, 63, v0")
    a("v_readfirstlane_b32 s3, v1")
    a("s_waitcnt lgkmcnt(0)")
    a(f"s_cmp_ge_u32 s2, {N_CONV}")
    a("s_cbranch_scc1 k1_notconv")
    k1_conv(a)
    a.label("k1_notconv")
    a.vm = []; a.lg = []
    a(f"s_cmp_ge_u32 s2, {N_CONV + N_W1}")
    a("s_cbranch_scc1 k1_notw1")
    k1_relayout(a, 1)
    a.label("k1_notw1")
    a.vm = []; a.lg = []
    a(f"s_cmp_ge_u32 s2, {N_CONV + N_W1 + N_W2}")
    a("s_cbranch_scc1 k1_notw2")
    k1_relayout(a, 2)
    a.label("k1_notw2")
    a.vm = []; a.lg = []
    k1_stats(a)
    a.label("k1_exit")
    a("s_endpgm")


G1_LDS = 7 * 20 * 1024


def row_stats_from_partials(a, P, mb, rinv, tmp):
    t0, t1, t2, t3 = tmp, tmp + 1, tmp + 2, tmp + 3
    a(f"v_add_f32 v{t0}, v{P}, v{P + 2}")
    for i in range(2, 8):
        a(f"v_add_f32 v{t0}, v{t0}, v{P + 2 * i}")
    a("s_mov_b32 s90, 0x3acccccd")
    a("s_mov_b32 s91, 0x3c4ccccd")
    a(f"v_mul_f32 v{t0}, s90, v{t0}")
    a(f"v_add_f32 v{t1}, v{P + 1}, v{P + 3}")
    for i in range(2, 8):
        a(f"v_add_f32 v{t1}, v{t1}, v{P + 2 * i + 1}")
    a(f"v_mov_b32 v{t3}, 0")
    for i in range(8):
        a(f"v_fma_f32 v{t2}, v{P + 2 * i}, s91, -v{t0}")
        a(f"v_fma_f32 v{t3}, v{t2}, v{t2}, v{t3}")
    a("s_mov_b32 s91, 0x42a00000")
    a(f"v_fma_f32 v{t1}, v{t3}, s91, v{t1}")
    a(f"v_mul_f32 v{t1}, s90, v{t1}")
    finish_stats(a, t0, t1, mb, rinv)


def finish_stats(a, mean, var, mb, rinv):
    bf16r(a, mb, mean)
    bf16r(a, var, var)
    a("s_mov_b32 s91, 0x3727c5ac")
    a(f"v_add_f32 v{var}, s91, v{var}")
    bf16r(a, var, var)
    a(f"v_sqrt_f32 v{var}, v{var}")
    a("s_nop 0")
    bf16r(a, var, var)
    a(f"v_rcp_f32 v{rinv}, v{var}")
    a("s_nop 0")


def gen_g1(a, name, layer):
    kernel_begin(a, name)
    a("s_cmp_ge_u32 s2, 256")
    a(f"s_cbranch_scc1 {name}_exit")
    load_ptrs(a)
    a("v_lshrrev_b32 v1, 6, v0")
    a("v_and_b32 v2, 63, v0")
    a("v_readfirstlane_b32 s3, v1")
    a("s_and_b32 s4, s2, 7")
    a("s_lshr_b32 s5, s2, 3")
    a("s_lshr_b32 s6, s4, 1")
    a("s_lshl_b32 s6, s6, 2")
    a("s_and_b32 s7, s5, 3")
    a("s_add_u32 s6, s6, s7")
    a("s_and_b32 s7, s4, 1")
    a("s_lshl_b32 s7, s7, 3")
    a("s_lshr_b32 s8, s5, 2")
    a("s_add_u32 s7, s7, s8")
    a("s_mul_i32 s8, s7, 7")
    a("s_min_u32 s8, s8, 101")
    a("s_waitcnt lgkmcnt(0)")
    if layer == 0:
        srd(a, 40, 16, 0, XBYTES)
        srd(a, 56, 38, ST0_OFF, STBYTES)
    else:
        srd(a, 40, 38, X2_OFF, XBYTES)
        srd(a, 56, 38, ST1_OFF, STBYTES)
    srd(a, 44, 38, Y_OFF, XBYTES)
    srd(a, 48, 38, XR_OFF, XBYTES)
    srd(a, 52, 38, W1F_OFF, WFBYTES)
    srd(a, 60, 38, H_OFF, HBYTES)
    srd(a, 64, 38, CS_OFF, F * 4)
    a("s_lshl_b32 s9, s6, 3")
    a("s_add_u32 s9, s9, s3")
    a("v_and_b32 v9, 15, v2")
    a("v_lshrrev_b32 v10, 4, v2")
    a("s_lshl_b32 s10, s9, 4")
    a("v_add_u32 v11, s10, v9")
    a("v_mul_u32_u24 v3, 1280, v11")
    a("v_lshl_add_u32 v3, v10, 4, v3")
    a("v_lshlrev_b32 v12, 6, v11")
    PST = 180
    for i in range(4):
        a.vmi(f"buffer_load_dwordx4 {vr(PST + 4 * i, 4)}, v12, s[56:59], 0 offen offset:{16 * i}", "st")
    a("v_lshlrev_b32 v4, 4, v2")
    a("v_add_u32 v5, 61440, v4")
    a("v_add_u32 v6, 122880, v4")
    a("s_add_u32 s11, s8, s3")
    a("s_mul_i32 s11, s11, 20480")
    a("v_add_u32 v7, s11, v4")
    a("s_mul_i32 s12, s3, 20480")
    a("s_mov_b32 s92, 0xffff0000")
    for b in range(5):
        a(f"s_mov_b32 s{70 + b}, {4096 * b}")
    XS = lambda d: 16 + 8 * d
    YS = lambda d: 20 + 8 * d
    BSET = [64, 92]
    ACC = 120
    ZQ = [148, 152]
    R, NMR, NM, S1, S2 = 170, 172, 174, 176, 178
    DEPTH = 6
    for i in range(28):
        a(f"v_mov_b32 v{ACC + i}, 0")
    for r in (S1, S1 + 1, S2, S2 + 1):
        a(f"v_mov_b32 v{r}, 0")
    a("s_cmp_eq_u32 s3, 7")
    a(f"s_cbranch_scc1 {name}_nodma")
    vm_save = list(a.vm)
    for dma in (True, False):
        if not dma:
            a.label(f"{name}_nodma")
            a.vm = list(vm_save)
            a.lg = []

        def issue_xy(kk):
            d = kk % DEPTH
            a.vmi(f"buffer_load_dwordx4 {vr(XS(d), 4)}, v3, s[40:43], 0 offen offset:{64 * kk}", f"xy{kk}")
            a.vmi(f"buffer_load_dwordx4 {vr(YS(d), 4)}, v3, s[44:47], 0 offen offset:{64 * kk}", f"xy{kk}")

        def issue_dma(blk):
            if not dma:
                return
            a(f"s_add_u32 m0, s12, {4096 * blk}")
            a("s_nop 0")
            for j in range(4):
                a.vmi(f"buffer_load_dwordx4 v7, s[52:55], s{70 + blk} offen offset:{1024 * j} lds", f"dma{blk}")

        def issue_b(kk):
            st = kk & 1
            for t in range(7):
                base = ["v4", "v5", "v6"][t // 3]
                a.lgi(f"ds_read_b128 {vr(BSET[st] + 4 * t, 4)}, {base} offset:{(t % 3) * 20480 + kk * 1024}", f"b{kk}")

        for kk in range(DEPTH):
            issue_xy(kk)
        issue_dma(0)
        issue_dma(1)
        a.vmwait("st")
        row_stats_from_partials(a, PST, NM, R, 160)
        a(f"v_mov_b32 v{R + 1}, v{R}")
        a(f"v_mul_f32 v{NMR}, v{NM}, v{R}")
        a(f"v_sub_f32 v{NMR}, 0, v{NMR}")
        a(f"v_mov_b32 v{NMR + 1}, v{NMR}")
        a(f"v_sub_f32 v{NM}, 0, v{NM}")
        a(f"v_mov_b32 v{NM + 1}, v{NM}")
        for kk in range(20):
            if kk % 4 == 0:
                blk = kk // 4
                a.vmwait(f"dma{blk}")
                a("s_barrier")
                if blk + 2 < 5:
                    issue_dma(blk + 2)
                issue_b(kk)
            d = kk % DEPTH
            a.vmwait(f"xy{kk}")
            zq = ZQ[kk & 1]
            for m in range(4):
                T = 156 + 0
                o = 0 if m % 2 == 0 else 0
                X, Yv, Tt, Z, Dv = 156, 158, 160, 162, 164
                a(f"v_lshlrev_b32 v{X}, 16, v{XS(d) + m}")
                a(f"v_and_b32 v{X + 1}, s92, v{XS(d) + m}")
                a(f"v_lshlrev_b32 v{Yv}, 16, v{YS(d) + m}")
                a(f"v_and_b32 v{Yv + 1}, s92, v{YS(d) + m}")
                a(f"v_pk_fma_f32 {vr(Tt, 2)}, {vr(X, 2)}, {vr(R, 2)}, {vr(NMR, 2)}")
                a(f"v_pk_fma_f32 {vr(Z, 2)}, {vr(Tt, 2)}, {vr(Yv, 2)}, {vr(X, 2)}")
                a(f"v_cvt_pk_bf16_f32 v{zq + m}, v{Z}, v{Z + 1}")
                a(f"v_pk_add_f32 {vr(Dv, 2)}, {vr(Z, 2)}, {vr(NM, 2)}")
                a(f"v_pk_add_f32 {vr(S1, 2)}, {vr(S1, 2)}, {vr(Dv, 2)}")
                a(f"v_pk_fma_f32 {vr(S2, 2)}, {vr(Dv, 2)}, {vr(Dv, 2)}, {vr(S2, 2)}")
            if kk + DEPTH < 20:
                issue_xy(kk + DEPTH)
            lab = a.newlabel(f"{name}_zs")
            a(f"s_and_b32 s13, s7, 15")
            a(f"s_cmp_lg_u32 s13, {kk & 15}")
            a(f"s_cbranch_scc1 {lab}")
            a(f"buffer_store_dwordx4 {vr(zq, 4)}, v3, s[48:51], 0 offen offset:{64 * kk}")
            a.label(lab)
            a.lgwait(f"b{kk}")
            if kk + 1 < 20 and (kk + 1) % 4 != 0:
                issue_b(kk + 1)
            st = kk & 1
            for t in range(7):
                a(f"v_mfma_f32_16x16x32_bf16 {vr(ACC + 4 * t, 4)}, {vr(BSET[st] + 4 * t, 4)}, {vr(zq, 4)}, {vr(ACC + 4 * t, 4)}")
        if dma:
            a(f"s_branch {name}_epi")
    a.label(f"{name}_epi")
    a.vm = []
    a.lg = []
    a("s_lshl_b32 s13, s8, 6")
    a("v_lshlrev_b32 v11, 4, v10")
    a("v_add_u32 v11, s13, v11")
    CSR = 16
    for t in range(7):
        a.vmi(f"buffer_load_dwordx4 {vr(CSR + 4 * t, 4)}, v11, s[64:67], 0 offen offset:{64 * t}", "cs")
    a(f"v_add_f32 v{S1}, v{S1}, v{S1 + 1}")
    a(f"v_add_f32 v{S2}, v{S2}, v{S2 + 1}")
    xor16_32_sum(a, S1, 160)
    xor16_32_sum(a, S2, 160)
    a("s_mov_b32 s90, 0x3acccccd")
    a(f"v_mul_f32 v{S1}, s90, v{S1}")
    a(f"v_mul_f32 v{S2}, s90, v{S2}")
    a(f"v_fma_f32 v{S2}, -v{S1}, v{S1}, v{S2}")
    a(f"v_max_f32 v{S2}, 0, v{S2}")
    a(f"v_sub_f32 v{S1}, v{S1}, v{NM}")
    MB, RI = 166, 167
    finish_stats(a, S1, S2, MB, RI)
    a("s_mul_i32 s14, s9, 54")
    a("s_mov_b32 s93, 0xbfb8aa3b")
    a.vmwait("cs")
    for t in range(7):
        U = 156
        for j in range(4):
            a(f"v_fma_f32 v{U + j}, -v{MB}, v{CSR + 4 * t + j}, v{ACC + 4 * t + j}")
        for j in range(4):
            a(f"v_mul_f32 v{U + j}, v{U + j}, v{RI}")
        a(f"v_cvt_pk_bf16_f32 v160, v{U}, v{U + 1}")
        a(f"v_cvt_pk_bf16_f32 v161, v{U + 2}, v{U + 3}")
        a(f"v_lshlrev_b32 v{U}, 16, v160")
        a(f"v_and_b32 v{U + 1}, s92, v160")
        a(f"v_lshlrev_b32 v{U + 2}, 16, v161")
        a(f"v_and_b32 v{U + 3}, s92, v161")
        E = 162
        for j in range(4):
            a(f"v_mul_f32 v{E + j}, s93, v{U + j}")
        for j in range(4):
            a(f"v_exp_f32 v{E + j}, v{E + j}")
        a("s_nop 0")
        for j in range(4):
            a(f"v_add_f32 v{E + j}, 1.0, v{E + j}")
        for j in range(4):
            a(f"v_rcp_f32 v{E + j}, v{E + j}")
        a("s_nop 0")
        for j in range(4):
            a(f"v_mul_f32 v{U + j}, v{U + j}, v{E + j}")
        o = 148 + 2 * (t % 4)
        a(f"v_cvt_pk_bf16_f32 v{o}, v{U}, v{U + 1}")
        a(f"v_cvt_pk_bf16_f32 v{o + 1}, v{U + 2}, v{U + 3}")
        a(f"s_add_u32 s15, s8, {t}")
        a("s_lshr_b32 s80, s15, 1")
        a("s_add_u32 s80, s80, s14")
        a("s_lshl_b32 s80, s80, 10")
        a("s_and_b32 s81, s15, 1")
        a("s_lshl_b32 s81, s81, 3")
        a("s_add_u32 s80, s80, s81")
        a.vmi(f"buffer_store_dwordx2 {vr(o, 2)}, v4, s[60:63], s80 offen")
    a.label(f"{name}_exit")
    a("s_endpgm")


G2_LDS = 4 * 15 * 1024


def gen_g2(a, name, layer):
    kernel_begin(a, name)
    a("s_cmp_ge_u32 s2, 256")
    a(f"s_cbranch_scc1 {name}_exit")
    load_ptrs(a)
    a("v_lshrrev_b32 v1, 6, v0")
    a("v_and_b32 v2, 63, v0")
    a("v_readfirstlane_b32 s3, v1")
    a("s_and_b32 s4, s2, 7")
    a("s_lshr_b32 s5, s2, 3")
    a("s_lshr_b32 s6, s4, 1")
    a("s_lshl_b32 s6, s6, 3")
    a("s_and_b32 s7, s5, 7")
    a("s_add_u32 s6, s6, s7")
    a("s_and_b32 s7, s4, 1")
    a("s_lshl_b32 s7, s7, 2")
    a("s_lshr_b32 s8, s5, 3")
    a("s_add_u32 s7, s7, s8")
    a("s_mul_i32 s8, s3, 14")
    a("s_cmp_eq_u32 s3, 3")
    a("s_cselect_b32 s9, 1, 0")
    a("s_sub_u32 s8, s8, s9")
    a("s_waitcnt lgkmcnt(0)")
    srd(a, 40, 38, H_OFF, HBYTES)
    srd(a, 44, 38, W2F_OFF, WFBYTES)
    srd(a, 48, 38, XR_OFF, XBYTES)
    if layer == 0:
        srd(a, 52, 38, X2_OFF, XBYTES)
        srd(a, 56, 38, ST1_OFF, STBYTES)
    else:
        srd(a, 52, 34, 0, XBYTES)
    a("v_lshlrev_b32 v3, 4, v2")
    a("s_mul_i32 s10, s6, 216")
    a("s_add_u32 s10, s10, s8")
    a("s_lshl_b32 s10, s10, 10")
    for aa in range(4):
        a(f"v_add_u32 v{4 + aa}, s10, v3")
        a("s_add_u32 s10, s10, 55296")
    a("s_mul_i32 s10, s7, 270")
    a("s_add_u32 s10, s10, s8")
    a("s_lshl_b32 s10, s10, 10")
    for t in range(5):
        a(f"v_add_u32 v{8 + t}, s10, v3")
        a("s_add_u32 s10, s10, 55296")
    for i in range(14):
        a(f"s_mov_b32 s{70 + i}, {1024 * i}")
    ACC = 16
    SLOT = lambda d: 96 + 36 * d
    for i in range(80):
        a(f"v_mov_b32 v{ACC + i}, 0")
    NS, PD = 14, 3

    def issue(i):
        sl = SLOT(i % 4)
        for aa in range(4):
            a.vmi(f"buffer_load_dwordx4 {vr(sl + 4 * aa, 4)}, v{4 + aa}, s[40:43], s{70 + i} offen", f"s{i}")
        for t in range(5):
            a.vmi(f"buffer_load_dwordx4 {vr(sl + 16 + 4 * t, 4)}, v{8 + t}, s[44:47], s{70 + i} offen", f"s{i}")

    for i in range(PD):
        issue(i)
    for i in range(NS):
        if i == NS - 1:
            a("s_cmp_ge_u32 s3, 2")
            a(f"s_cbranch_scc1 {name}_red")
        a.vmwait(f"s{i}")
        if i + PD < NS:
            issue(i + PD)
        sl = SLOT(i % 4)
        for aa in range(4):
            for t in range(5):
                c = ACC + 4 * (5 * aa + t)
                a(f"v_mfma_f32_16x16x32_bf16 {vr(c, 4)}, {vr(sl + 16 + 4 * t, 4)}, {vr(sl + 4 * aa, 4)}, {vr(c, 4)}")
    a.label(f"{name}_red")
    a.vmall()
    a("v_and_b32 v9, 15, v2")
    a("v_lshrrev_b32 v10, 4, v2")
    a("s_lshl_b32 s10, s6, 2")
    a("s_add_u32 s10, s10, s3")
    a("s_lshl_b32 s10, s10, 4")
    a("v_add_u32 v11, s10, v9")
    a("v_mul_u32_u24 v12, 1280, v11")
    a("s_mul_i32 s11, s7, 160")
    a("v_lshl_add_u32 v12, v10, 3, v12")
    a("v_add_u32 v12, s11, v12")
    RES = 96
    for t in range(5):
        a.vmi(f"buffer_load_dwordx2 {vr(RES + 2 * t, 2)}, v12, s[48:51], 0 offen offset:{32 * t}", "res")
    a("s_nop 7")
    for dlt in range(1, 4):
        pass
    for w in range(4):
        lab = f"{name}_w{w}"
        if w < 3:
            a(f"s_cmp_eq_u32 s3, {w}")
            a(f"s_cbranch_scc1 {lab}")
    order = [3, 0, 1, 2]
    for w in order:
        if w != 3:
            a.label(f"{name}_w{w}")
        a.lg = []
        for aa in range(4):
            if aa == w:
                continue
            j = (w - aa - 1) % 4
            for t in range(5):
                c = ACC + 4 * (5 * aa + t)
                a.lgi(f"ds_write_b128 v3, {vr(c, 4)} offset:{(aa * 15 + j * 5 + t) * 1024}")
        if w != 0:
            for i in range(20):
                a(f"v_mov_b32 v{ACC + i}, v{ACC + 20 * w + i}")
        if w != order[-1]:
            a(f"s_branch {name}_join")
    a.label(f"{name}_join")
    a.lg = ["x"]
    a.lgall()
    a("s_barrier")
    a("s_mul_i32 s12, s3, 15360")
    a("v_add_u32 v13, s12, v3")
    PB = 112
    for j in range(3):
        for t in range(5):
            a.lgi(f"ds_read_b128 {vr(PB + 20 * j + 4 * t, 4)}, v13 offset:{(j * 5 + t) * 1024}", f"p{j}")
    for j in range(3):
        a.lgwait(f"p{j}")
        for i in range(20):
            a(f"v_add_f32 v{ACC + i}, v{ACC + i}, v{PB + 20 * j + i}")
    a("s_mov_b32 s92, 0xffff0000")
    a.vmwait("res")
    XO = 40
    for t in range(5):
        c = ACC + 4 * t
        a(f"v_cvt_pk_bf16_f32 v176, v{c}, v{c + 1}")
        a(f"v_cvt_pk_bf16_f32 v177, v{c + 2}, v{c + 3}")
        a(f"v_lshlrev_b32 v{c}, 16, v176")
        a(f"v_and_b32 v{c + 1}, s92, v176")
        a(f"v_lshlrev_b32 v{c + 2}, 16, v177")
        a(f"v_and_b32 v{c + 3}, s92, v177")
        a(f"v_lshlrev_b32 v178, 16, v{RES + 2 * t}")
        a(f"v_and_b32 v179, s92, v{RES + 2 * t}")
        a(f"v_lshlrev_b32 v180, 16, v{RES + 2 * t + 1}")
        a(f"v_and_b32 v181, s92, v{RES + 2 * t + 1}")
        for j in range(4):
            a(f"v_add_f32 v{c + j}, v{c + j}, v{178 + j}")
        o = 184 + 2 * t
        a(f"v_cvt_pk_bf16_f32 v{o}, v{c}, v{c + 1}")
        a(f"v_cvt_pk_bf16_f32 v{o + 1}, v{c + 2}, v{c + 3}")
        a.vmi(f"buffer_store_dwordx2 {vr(o, 2)}, v12, s[52:55], 0 offen offset:{32 * t}")
        if layer == 0:
            a(f"v_lshlrev_b32 v{XO + 4 * t}, 16, v{o}")
            a(f"v_and_b32 v{XO + 4 * t + 1}, s92, v{o}")
            a(f"v_lshlrev_b32 v{XO + 4 * t + 2}, 16, v{o + 1}")
            a(f"v_and_b32 v{XO + 4 * t + 3}, s92, v{o + 1}")
    if layer == 0:
        a(f"v_add_f32 v176, v{XO}, v{XO + 1}")
        for i in range(2, 20):
            a(f"v_add_f32 v176, v176, v{XO + i}")
        xor16_32_sum(a, 176, 178)
        a("s_mov_b32 s91, 0x3c4ccccd")
        a("v_mul_f32 v178, s91, v176")
        for i in range(20):
            a(f"v_sub_f32 v{XO + i}, v{XO + i}, v178")
        a(f"v_mul_f32 v177, v{XO}, v{XO}")
        for i in range(1, 20):
            a(f"v_fma_f32 v177, v{XO + i}, v{XO + i}, v177")
        xor16_32_sum(a, 177, 178)
        a("v_lshlrev_b32 v11, 6, v11")
        a("s_lshl_b32 s11, s7, 3")
        a("v_add_u32 v11, s11, v11")
        a.vmi("buffer_store_dwordx2 v[176:177], v11, s[56:59], 0 offen")
    a.label(f"{name}_exit")
    a("s_endpgm")


def main():
    a = Asm()
    hdr = f"""; Kernarg layout (96 bytes, ptrs only, base s[0:1]): q,k,v,shift_k,ssm_k,ssm_D,B_x,w1,w2,out,debug,ws
; @launch kernel=k1_kernel grid=({K1_GRID},1,1) block=(256,1,1) lds={K1_LDS}
; @launch kernel=g1a_kernel grid=(256,1,1) block=(512,1,1) lds={G1_LDS}
; @launch kernel=g2a_kernel grid=(256,1,1) block=(256,1,1) lds={G2_LDS}
; @launch kernel=g1b_kernel grid=(256,1,1) block=(512,1,1) lds={G1_LDS}
; @launch kernel=g2b_kernel grid=(256,1,1) block=(256,1,1) lds={G2_LDS}
.amdgcn_target "amdgcn-amd-amdhsa--gfx950"
.text
"""
    gen_k1(a)
    gen_g1(a, "g1a_kernel", 0)
    gen_g2(a, "g2a_kernel", 0)
    gen_g1(a, "g1b_kernel", 1)
    gen_g2(a, "g2b_kernel", 1)
    out = hdr + "\n".join(a.lines) + "\n" + '.section .rodata,"a"\n'
    out += kd("k1_kernel", 176) + kd("g1a_kernel", 200) + kd("g2a_kernel", 240) + kd("g1b_kernel", 200) + kd("g2b_kernel", 240)
    path = sys.argv[1] if len(sys.argv) > 1 else f"cdna_kernels/{NAME}.s"
    open(path, "w").write(out)
    print("wrote", path, len(out), "bytes")


if __name__ == "__main__":
    main()
```
